```python
import torch

def _softmax(x, axis=-1):
    return torch.softmax(x, dim=axis)
def _gelu(x):
    return torch.nn.functional.gelu(x, approximate="tanh")
def _silu(x):
    return torch.nn.functional.silu(x)
def _sigmoid(x):
    return torch.sigmoid(x)
def _layernorm(x, axis=-1, eps=1e-5):
    m = x.mean(dim=axis, keepdim=True)
    v = x.var(dim=axis, keepdim=True, unbiased=False)
    return (x - m) / torch.sqrt(v + eps)
def _scatter_add(tgt, idx, src, axis=0):
    return tgt.clone().index_add_(axis, idx, src)
def _segment_sum(src, seg, n):
    out = torch.zeros((n,) + src.shape[1:], dtype=src.dtype)
    return out.index_add_(0, seg, src)
def _pad(x, pw):
    flat = tuple(v for pair in reversed(pw) for v in pair)
    return torch.nn.functional.pad(x, flat)

kernel_name = 'sequential_preLN__sliding_block__glu_gated_bilinear__prompt'

def setup_inputs():

    _w = (lambda a: (lambda t: t.to(torch.bfloat16) if t.is_floating_point() else t)(torch.as_tensor(a)))
    def _A_setup():
        B, S, D = 1, 2048, 640
        return {
            "x": _w((lambda *s: torch.randn(*s, dtype=torch.bfloat16) * 0.05)(B, S, D)),
            "wqkv": _w((lambda *s: torch.randn(*s, dtype=torch.bfloat16) * 0.05)(D, 3 * D)),
            "wo": _w((lambda *s: torch.randn(*s, dtype=torch.bfloat16) * 0.05)(D, D)),
        }
    _A_in = _A_setup()

    def _B_setup():
        B, S, D, F = 1, 2048, 640, 1536
        return {
            "x": _w((lambda *s: torch.randn(*s, dtype=torch.bfloat16) * 0.05)(B, S, D)),
            "w_gate": _w((lambda *s: torch.randn(*s, dtype=torch.bfloat16) * 0.8)(D, F) * (D ** -0.5)),
            "w_up": _w((lambda *s: torch.randn(*s, dtype=torch.bfloat16) * 0.8)(D, F) * (D ** -0.5)),
            "w_down": _w((lambda *s: torch.randn(*s, dtype=torch.bfloat16) * 0.8)(F, D) * (F ** -0.5)),
        }
    _B_in = _B_setup()

    return {
        "A_x": _A_in["x"],
        "A_wqkv": _A_in["wqkv"],
        "A_wo": _A_in["wo"],
        "B_x": _B_in["x"],
        "B_w_gate": _B_in["w_gate"],
        "B_w_up": _B_in["w_up"],
        "B_w_down": _B_in["w_down"],
    }

def reference(A_x, A_wqkv, A_wo, B_x, B_w_gate, B_w_up, B_w_down):
    def _A_ref(x, wqkv, wo):
        B, S, D = x.shape
        H = 32; Dh = D // H; W = 256
        qkv = (lambda x, *d: x.permute(*d))((x @ wqkv).reshape(B, S, 3, H, Dh), 2, 0, 3, 1, 4)
        q, k, v = qkv[0], qkv[1], qkv[2]
        scores = torch.einsum("bhqd,bhkd->bhqk", q, k) * (Dh ** -0.5)
        idx = torch.arange(S)
        mask = (idx[:, None] - idx[None, :] >= 0) & (idx[:, None] - idx[None, :] < W)
        scores = torch.where(mask[None, None], scores, -1e9)
        p = _softmax(scores, axis=-1)
        o = torch.einsum("bhqk,bhkd->bhqd", p, v)
        return (lambda x, *d: x.permute(*d))(o, 0, 2, 1, 3).reshape(B, S, D) @ wo

    def _B_ref(x, w_gate, w_up, w_down):
        g = torch.einsum("bsd,df->bsf", x, w_gate)
        u = torch.einsum("bsd,df->bsf", x, w_up)
        h = g * u
        return torch.einsum("bsf,fd->bsd", h, w_down)

    x = A_x
    h = x + _A_ref(_layernorm(x, axis=-1), A_wqkv, A_wo)
    h2 = h + _B_ref(_layernorm(h, axis=-1), B_w_gate, B_w_up, B_w_down)
    return h2
```

```python
import re

_REG = re.compile(r'^(-|\|)?(abs\()?([vsa])(\d+)\)?\|?$')
_RNG = re.compile(r'^(-)?([vsa])\[(\d+):(\d+)\]$')

def regs_of(tok):
    tok = tok.strip()
    m = _RNG.match(tok)
    if m:
        return {(m.group(2), i) for i in range(int(m.group(3)), int(m.group(4)) + 1)}
    m = _REG.match(tok)
    if m:
        return {(m.group(3), int(m.group(4)))}
    if tok == 'vcc':
        return {('s', 106), ('s', 107)}
    if tok == 'vcc_lo':
        return {('s', 106)}
    if tok == 'vcc_hi':
        return {('s', 107)}
    if tok == 'exec':
        return {('s', 126), ('s', 127)}
    if tok == 'm0':
        return {('s', 124)}
    return set()

TRANS = ('v_exp_f32', 'v_log_f32', 'v_rcp_f32', 'v_rsq_f32', 'v_sqrt_f32', 'v_sin_f32', 'v_cos_f32')
VCC = {('s', 106), ('s', 107)}

def split_ops(s):
    out, cur, depth = [], '', 0
    for ch in s:
        if ch in '[(':
            depth += 1
        if ch in '])':
            depth -= 1
        if ch == ',' and depth == 0:
            out.append(cur.strip()); cur = ''
        else:
            cur += ch
    if cur.strip():
        out.append(cur.strip())
    return out

class Ins:
    __slots__ = ('op', 'kind', 'rd', 'wr', 'passes', 'srcc', 'ab', 'pos', 'wide_data', 'lds_dma', 'dst', 'dpp')

def analyse(text):
    parts = text.split(None, 1)
    op = parts[0]
    rest = parts[1] if len(parts) > 1 else ''
    ops = split_ops(rest)
    mods = []
    if ops:
        last = ops[-1].split()
        ops[-1] = last[0]
        mods = last[1:]
    I = Ins()
    I.op = op; I.rd = set(); I.wr = set(); I.passes = 0; I.srcc = set(); I.ab = set()
    I.wide_data = set(); I.lds_dma = False; I.dst = None
    I.dpp = any(m.startswith(('row_', 'quad_perm', 'wave_', 'bank_mask')) for m in mods)
    R = [regs_of(o) for o in ops]
    base = op.replace('_e32', '').replace('_e64', '').replace('_dpp', '').replace('_sdwa', '')
    if op.startswith('v_mfma'):
        I.kind = 'mfma'
        I.passes = 8 if '32x32x16' in op else 4 if '16x16x32' in op else None
        assert I.passes, op
        I.wr = R[0]; I.ab = R[1] | R[2]; I.srcc = R[3]; I.rd = I.ab | I.srcc; I.dst = ops[0]
    elif op.startswith('v_'):
        I.kind = 'valu'
        if base.startswith('v_cmp'):
            I.wr = R[0]; I.rd = set().union(*R[1:])
        elif base in ('v_readfirstlane_b32', 'v_readlane_b32'):
            I.wr = R[0]; I.rd = set().union(*R[1:])
        elif base.startswith('v_permlane'):
            I.wr = R[0] | R[1]; I.rd = R[0] | R[1]
        elif base in ('v_add_co_u32', 'v_sub_co_u32', 'v_addc_co_u32', 'v_subb_co_u32'):
            I.wr = R[0] | R[1]; I.rd = set().union(*R[2:])
        elif base in ('v_fmac_f32', 'v_dot2c_f32_bf16', 'v_writelane_b32'):
            I.wr = R[0]; I.rd = set().union(*R)
        elif base == 'v_nop':
            pass
        else:
            I.wr = R[0]; I.rd = set().union(*R[1:]) if len(R) > 1 else set()
            if I.dpp or '_sdwa' in op:
                I.rd |= R[0]
    elif op.startswith(('buffer_', 'global_')):
        I.kind = 'vmem'
        is_lds = ('lds' in mods) or ('_lds_' in op)
        if op.startswith(('buffer_wbl2', 'buffer_inv')):
            pass
        elif 'load' in op and not is_lds:
            I.wr = R[0]; I.rd = set().union(*R[1:])
        elif is_lds:
            I.rd = set().union(*R) | {('s', 124)}; I.lds_dma = True
        elif 'atomic' in op:
            I.rd = set().union(*R)
            if 'sc0' in mods:
                I.wr = R[0]
        else:
            I.rd = set().union(*R)
            if op.endswith(('x3', 'x4')):
                I.wide_data = R[0] if op.startswith('buffer_') else R[1]
    elif op.startswith('ds_'):
        I.kind = 'ds'
        if op.startswith(('ds_read', 'ds_bpermute', 'ds_permute', 'ds_swizzle')):
            I.wr = R[0]; I.rd = set().union(*R[1:])
        else:
            I.rd = set().union(*R)
    elif op.startswith('s_'):
        I.kind = 'salu'
        if op.startswith(('s_load', 's_buffer_load', 's_memtime', 's_memrealtime')):
            I.kind = 'smem'; I.wr = R[0]; I.rd = set().union(*R[1:]) if len(R) > 1 else set()
        elif op.startswith(('s_cmp', 's_cbranch', 's_branch', 's_waitcnt', 's_barrier', 's_nop', 's_endpgm', 's_setprio', 's_sleep', 's_bitcmp', 's_setpc')):
            I.rd = set().union(*R) if R else set()
        elif 'saveexec' in op:
            I.wr = R[0] | {('s', 126), ('s', 127)}; I.rd = R[1] | {('s', 126), ('s', 127)}
        else:
            I.wr = R[0] if R else set(); I.rd = set().union(*R[1:]) if len(R) > 1 else set()
    else:
        raise ValueError('unknown instruction: ' + text)
    I.op = base
    return I

def isv(s):
    return {r for r in s if r[0] in 'va'}
def iss(s):
    return {r for r in s if r[0] == 's'}

class Asm:
    def __init__(self):
        self.lines = []
        self.hist = []
        self.pos = 0
        self.nops = 0
        self.maxv = -1; self.maxa = -1; self.maxs = -1
        self.uid = 0

    def raw(self, s):
        self.lines.append(s)

    def comment(self, s):
        self.lines.append('    ; ' + s)

    def newlabel(self, stem):
        self.uid += 1
        return 'L_%s_%d' % (stem, self.uid)

    def label(self, name):
        self.lines.append(name + ':')

    def fence(self, n=None):
        need = 0
        for P in self.hist:
            d = self.pos - P.pos - 1
            w = 0
            if P.kind == 'mfma':
                w = 12 if P.passes == 8 else 8
            elif P.kind == 'valu':
                w = 5 if iss(P.wr) else 2
            elif P.kind == 'vmem' and P.wide_data:
                w = 2
            elif P.kind == 'salu' and ('s', 124) in P.wr:
                w = 1
            need = max(need, w - d)
        self._pad(need)

    def _pad(self, n):
        while n > 0:
            k = min(n, 16)
            self.lines.append('    s_nop %d' % (k - 1))
            self.pos += k
            self.nops += 1
            n -= k

    def need(self, P, C):
        w = 0
        if P.kind == 'valu':
            vw = isv(P.wr); sw = iss(P.wr)
            if C.kind == 'mfma' and vw & C.rd:
                w = max(w, 2)
            if C.kind == 'valu':
                if P.op in TRANS and C.op not in TRANS and vw & (C.rd | C.wr):
                    w = max(w, 1)
                if P.op in TRANS and C.op in TRANS and vw & C.rd:
                    w = max(w, 1)
                if C.op in ('v_readfirstlane_b32', 'v_readlane_b32') and vw & C.rd:
                    w = max(w, 1)
                if (C.op.startswith('v_permlane') or C.dpp) and vw & C.rd:
                    w = max(w, 2)
                if sw & C.rd:
                    w = max(w, 4 if C.op in ('v_readlane_b32', 'v_writelane_b32') else 2)
            if C.kind == 'vmem' and sw & C.rd:
                w = max(w, 5)
            if C.kind in ('salu', 'smem') and sw & C.rd:
                w = max(w, 2)
            if P.op in TRANS and C.kind in ('vmem', 'ds', 'mfma') and vw & C.rd:
                w = max(w, 2)
            if ('s', 126) in sw and C.kind in ('mfma', 'valu'):
                w = max(w, 5)
        elif P.kind == 'mfma':
            big = P.passes == 8
            if C.kind == 'mfma':
                if P.wr & C.srcc:
                    if not (C.srcc == P.wr and C.passes == P.passes):
                        w = max(w, 10 if big else 6)
                if P.wr & C.ab:
                    w = max(w, 12 if big else 8)
                if (P.wr & C.wr) and not (P.wr & C.srcc):
                    w = max(w, 12 if big else 8)
            elif C.kind in ('valu', 'vmem', 'ds'):
                if P.wr & (C.rd | C.wr):
                    w = max(w, 12 if big else 8)
                if C.kind == 'valu' and P.srcc & C.wr:
                    w = max(w, 7 if big else 3)
        elif P.kind == 'vmem':
            if P.wide_data & C.wr:
                w = max(w, 2)
        elif P.kind == 'salu':
            if ('s', 124) in P.wr and C.kind == 'vmem' and C.lds_dma:
                w = max(w, 1)
        return w

    def __call__(self, text):
        text = text.strip()
        C = analyse(text)
        if C.op == 'v_cndmask_b32' and len(split_ops(text.split(None, 1)[1])) == 3:
            C.rd |= VCC
        pad = 0
        for P in self.hist:
            d = self.pos - P.pos - 1
            pad = max(pad, self.need(P, C) - d)
        self._pad(pad)
        C.pos = self.pos
        if C.op == 's_nop':
            self.pos += int(text.split()[1], 0) + 1
        else:
            self.pos += 1
        self.hist.append(C)
        self.hist = [P for P in self.hist if self.pos - P.pos <= 20]
        for f, i in C.rd | C.wr:
            if f == 'v': self.maxv = max(self.maxv, i)
            elif f == 'a': self.maxa = max(self.maxa, i)
            elif f == 's' and i < 102: self.maxs = max(self.maxs, i)
        self.lines.append('    ' + text)

    def reset_stats(self):
        self.maxv = self.maxa = self.maxs = -1
        self.hist = []

    def text(self):
        return '\n'.join(self.lines) + '\n'

def vr(a, n=1):
    return 'v%d' % a if n == 1 else 'v[%d:%d]' % (a, a + n - 1)
def ar(a, n=1):
    return 'a%d' % a if n == 1 else 'a[%d:%d]' % (a, a + n - 1)
def sr(a, n=1):
    return 's%d' % a if n == 1 else 's[%d:%d]' % (a, a + n - 1)
```

```python
import sys, struct, math
from asmlib import Asm, vr, ar, sr

NAME = 'sequential_preLN__sliding_block__glu_gated_bilinear__prompt'

QKV_OFF = 0x0;        QKV_SZ = 3 * 32 * 64 * 1536
OF_OFF = 0x900000;    OF_SZ = 64 * 40 * 1024
HF_OFF = 0xB80000;    HF_SZ = 64 * 40 * 1024
GF_OFF = 0xE00000;    GF_SZ = 64 * 96 * 1024
SP_OFF = 0x1400000;   SP_SZ = 2048 * 64
CF_OFF = 0x1420000;   CF_SZ = 96 * 512
WS_SZ = 0x1430000

def f32(x):
    return '0x%08x' % struct.unpack('<I', struct.pack('<f', x))[0]

OPT = dict(prefetch=1, codepf=1)

A = Asm()
kernels = []

def begin_kernel(label):
    A.raw('.text')
    A.raw('.globl %s' % label)
    A.raw('.p2align 8')
    A.raw('.type %s,@function' % label)
    A.raw('%s:' % label)
    A.reset_stats()

def end_kernel(label, grid, block, lds):
    nv = A.maxv + 1
    acc_off = (nv + 3) // 4 * 4
    tot = acc_off + A.maxa + 1 if A.maxa >= 0 else nv
    kernels.append((label, grid, block, lds, tot, acc_off, A.maxs + 1))

def srd(d, lo, hi, size, add=0):
    if add:
        A('s_add_u32 s%d, s%d, 0x%x' % (d, lo, add))
        A('s_addc_u32 s%d, s%d, 0' % (d + 1, hi))
    else:
        A('s_mov_b32 s%d, s%d' % (d, lo))
        A('s_mov_b32 s%d, s%d' % (d + 1, hi))
    A('s_mov_b32 s%d, 0x%x' % (d + 2, size))
    A('s_mov_b32 s%d, 0x00020000' % (d + 3))

def bf16_round(dst, src):
    A('v_cvt_pk_bf16_f32 v%d, v%d, v%d' % (dst, src, src))
    A('v_lshlrev_b32 v%d, 16, v%d' % (dst, dst))

def row_stats(vsum, vsq, vneg_m, vrstd, t0):
    A('v_mul_f32 v%d, %s, v%d' % (vsum, f32(1.0 / 640), vsum))
    A('v_mul_f32 v%d, %s, v%d' % (vsq, f32(1.0 / 640), vsq))
    A('v_fma_f32 v%d, -v%d, v%d, v%d' % (vsq, vsum, vsum, vsq))
    A('v_max_f32 v%d, 0, v%d' % (vsq, vsq))
    bf16_round(t0, vsum)
    A('v_xor_b32 v%d, 0x80000000, v%d' % (vneg_m, t0))
    bf16_round(vsq, vsq)
    A('v_add_f32 v%d, %s, v%d' % (vsq, f32(1e-5), vsq))
    bf16_round(vsq, vsq)
    A('v_sqrt_f32 v%d, v%d' % (vsq, vsq))
    bf16_round(vsq, vsq)
    A('v_rcp_f32 v%d, v%d' % (vrstd, vsq))

def split3(dst, src, t0, t1, sperm):
    A('v_and_b32 v%d, 0xffff0000, v%d' % (t0, src))
    A('v_sub_f32 v%d, v%d, v%d' % (t0, src, t0))
    A('v_and_b32 v%d, 0xffff0000, v%d' % (t1, t0))
    A('v_sub_f32 v%d, v%d, v%d' % (t1, t0, t1))
    A('v_perm_b32 v%d, v%d, v%d, s%d' % (dst, t0, src, sperm))
    A('v_lshrrev_b32 v%d, 16, v%d' % (dst + 1, t1))
    A('v_mov_b32 v%d, 0' % (dst + 2))
    A('v_mov_b32 v%d, 0' % (dst + 3))

def k1():
    L = 'k1_qkv_kernel'
    begin_kernel(L)
    R = 4
    NST = 10
    sW, sRB, sCT, sT0, sT1 = 24, 25, 26, 27, 28
    sXo, sWo, sM = 29, 30, 31
    SX, SW, SO = 32, 36, 40
    sWT, sWN, sPERM, sQS, sTB0, sTB1, sMASK = 44, 45, 46, 47, 48, 49, 50
    sPC = 52
    A('s_cmp_ge_u32 s2, 256')
    A('s_cbranch_scc1 L_k1_end')
    A('s_load_dwordx4 s[4:7], s[0:1], 0')
    A('s_load_dwordx4 s[12:15], s[0:1], 32')
    A('s_load_dwordx2 s[22:23], s[0:1], 72')
    vLANE, vT0, vT1, vT2, vT3 = 1, 2, 3, 4, 5
    vPF = 6
    if OPT['codepf']:
        A('s_getpc_b64 s[%d:%d]' % (sPC, sPC + 1))
        A('s_lshr_b32 s%d, s2, 3' % sT0)
        A('s_and_b32 s%d, s%d, 1' % (sT0, sT0))
        A('s_lshl_b32 s%d, s%d, 15' % (sT0, sT0))
        A('v_lshlrev_b32 v%d, 7, v0' % vT0)
        A('v_add_u32 v%d, s%d, v%d' % (vT0, sT0, vT0))
        A('v_min_u32 v%d, CODE_BYTES, v%d' % (vT0, vT0))
        A('global_load_dword v%d, v%d, s[%d:%d]' % (vPF, vT0, sPC, sPC + 1))
    npf0 = 1 if OPT['codepf'] else 0
    A('v_lshrrev_b32 v%d, 6, v0' % vT0)
    A('v_and_b32 v%d, 63, v0' % vLANE)
    A('v_readfirstlane_b32 s%d, v%d' % (sW, vT0))
    A('s_and_b32 s%d, s2, 7' % sT0)
    A('s_lshr_b32 s%d, s2, 3' % sT1)
    A('s_lshl_b32 s%d, s%d, 1' % (sRB, sT0))
    A('s_and_b32 s%d, s%d, 1' % (sT0, sT1))
    A('s_add_u32 s%d, s%d, s%d' % (sRB, sRB, sT0))
    A('s_lshr_b32 s%d, s%d, 1' % (sCT, sT1))
    A('s_mov_b32 s%d, 0x07060302' % sPERM)
    A('s_mov_b32 s%d, 0xffff0000' % sMASK)
    A('s_cmp_eq_u32 s%d, 15' % sCT)
    A('s_cbranch_scc1 L_k1_spare')
    vDX, vDW = 12, 16
    A('s_lshl_b32 s%d, s%d, 7' % (sT0, sRB))
    A('s_lshl_b32 s%d, s%d, 5' % (sT1, sW))
    A('s_add_u32 s%d, s%d, s%d' % (sT0, sT0, sT1))
    A('v_lshrrev_b32 v%d, 3, v%d' % (vT0, vLANE))
    A('v_add_u32 v%d, s%d, v%d' % (vT0, sT0, vT0))
    A('v_mul_u32_u24 v%d, 1280, v%d' % (vT0, vT0))
    A('v_and_b32 v%d, 7, v%d' % (vT1, vLANE))
    A('v_lshrrev_b32 v%d, 4, v%d' % (vT2, vLANE))
    A('v_xor_b32 v%d, v%d, v%d' % (vT1, vT1, vT2))
    A('v_lshlrev_b32 v%d, 4, v%d' % (vT1, vT1))
    A('v_xor_b32 v%d, 64, v%d' % (vT3, vT1))
    for j in range(4):
        A('v_add_u32 v%d, v%d, v%d' % (vDX + j, vT0, vT1 if j % 2 == 0 else vT3))
        if j:
            A('v_add_u32 v%d, %d, v%d' % (vDX + j, 8 * j * 1280 - 1024 * j, vDX + j))
    A('s_lshl_b32 s%d, s%d, 4' % (sT0, sW))
    A('v_add_u32 v%d, s%d, v%d' % (vT0, sT0, vT2))
    A('v_mul_u32_u24 v%d, 3840, v%d' % (vT0, vT0))
    A('v_bfe_u32 v%d, v%d, 2, 2' % (vT1, vLANE))
    A('v_xor_b32 v%d, v%d, v%d' % (vT1, vT1, vT2))
    A('v_lshlrev_b32 v%d, 6, v%d' % (vT1, vT1))
    A('v_and_b32 v%d, 3, v%d' % (vT3, vLANE))
    A('v_lshl_add_u32 v%d, v%d, 4, v%d' % (vT1, vT3, vT1))
    A('s_lshl_b32 s%d, s%d, 8' % (sT0, sCT))
    A('v_add3_u32 v%d, v%d, v%d, s%d' % (vDW, vT0, vT1, sT0))
    for j in range(1, 4):
        A('v_add_u32 v%d, %d, v%d' % (vDW + j, 4 * j * 3840 - 1024 * j, vDW))
    A('s_lshl_b32 s%d, s%d, 12' % (sM, sW))
    A('s_mov_b32 s%d, 0' % sXo)
    A('s_mov_b32 s%d, 0' % sWo)
    A('s_waitcnt lgkmcnt(0)')
    srd(SX, 4, 5, 2048 * 1280)
    srd(SW, 6, 7, 640 * 3840)

    vm = [npf0]
    issued = [npf0]
    stage_mark = {}
    def dma_stage(s):
        slot = s % R
        A('s_add_u32 m0, s%d, %d' % (sM, slot * 32768))
        for j in range(4):
            A('buffer_load_dwordx4 v%d, s[%d:%d], s%d offen offset:%d lds' % (vDX + j, SX, SX + 3, sXo, 1024 * j))
        A('s_add_u32 m0, s%d, %d' % (sM, slot * 32768 + 16384))
        for j in range(4):
            A('buffer_load_dwordx4 v%d, s[%d:%d], s%d offen offset:%d lds' % (vDW + j, SW, SW + 3, sWo, 1024 * j))
        A('s_add_u32 s%d, s%d, 128' % (sXo, sXo))
        A('s_add_u32 s%d, s%d, %d' % (sWo, sWo, 64 * 3840))
        issued[0] += 8
        stage_mark[s] = issued[0]
    dma_stage(0)
    if OPT['prefetch']:
        A('v_lshrrev_b32 v%d, 1, v0' % vT0)
        A('v_mul_u32_u24 v%d, 3840, v%d' % (vT0, vT0))
        A('v_and_b32 v%d, 1, v0' % vT1)
        A('v_lshl_add_u32 v%d, v%d, 7, v%d' % (vT0, vT1, vT0))
        A('s_lshl_b32 s%d, s%d, 8' % (sT0, sCT))
        nrow = 640 - 64 * R
        i = 0
        for r0 in range(0, nrow, 128):
            A('s_add_u32 s%d, s%d, %d' % (sT1, sT0, (64 * R + r0) * 3840))
            A('buffer_load_dword v%d, v%d, s[%d:%d], s%d offen' % (vPF + 1 + i, vT0, SW, SW + 3, sT1))
            issued[0] += 1; i += 1
        A('s_mul_i32 s%d, s%d, %d' % (sT0, sRB, 128 * 1280))
        A('s_mul_i32 s%d, s%d, %d' % (sT1, sCT, 86 * 128))
        A('s_add_u32 s%d, s%d, s%d' % (sT0, sT0, sT1))
        A('v_lshlrev_b32 v%d, 7, v0' % vT0)
        A('buffer_load_dword v%d, v%d, s[%d:%d], s%d offen' % (vPF + 1 + i, vT0, SX, SX + 3, sT0))
        issued[0] += 1
    for s in range(1, R):
        dma_stage(s)
    A('s_lshr_b32 s%d, s%d, 1' % (sWT, sW))
    A('s_and_b32 s%d, s%d, 1' % (sWN, sW))
    NSET = (R + 1) // 2
    vAX = 20
    vAW = vAX + NSET * 8
    A('v_and_b32 v%d, 31, v%d' % (vT0, vLANE))
    A('v_lshrrev_b32 v%d, 5, v%d' % (vT1, vLANE))
    A('v_bfe_u32 v%d, v%d, 1, 3' % (vT2, vLANE))
    A('v_xor_b32 v%d, v%d, v%d' % (vT2, vT2, vT1))
    A('v_lshlrev_b32 v%d, 4, v%d' % (vT2, vT2))
    A('v_lshl_add_u32 v%d, v%d, 7, v%d' % (vT2, vT0, vT2))
    A('s_lshl_b32 s%d, s%d, 13' % (sT0, sWT))
    A('s_lshl_b32 s%d, s%d, 12' % (sT1, sWN))
    A('s_add_u32 s%d, s%d, s%d' % (sT0, sT0, sT1))
    A('v_add_u32 v%d, s%d, v%d' % (vT2, sT0, vT2))
    for st in range(NSET):
        for b in range(2):
            for ks in range(4):
                c = (st * 65536) ^ (b * 4096) ^ (ks * 32)
                A('v_xor_b32 v%d, 0x%x, v%d' % (vAX + st * 8 + b * 4 + ks, c, vT2))
    A('v_bfe_u32 v%d, v%d, 2, 2' % (vT2, vLANE))
    A('v_lshl_add_u32 v%d, v%d, 3, v%d' % (vT3, vT1, vT2))
    A('v_lshlrev_b32 v%d, 8, v%d' % (vT3, vT3))
    A('s_lshl_b32 s%d, s%d, 1' % (sT0, sWN))
    A('s_add_u32 s%d, s%d, s%d' % (sT0, sT0, sWT))
    A('v_xor_b32 v%d, s%d, v%d' % (vT2, sT0, vT2))
    A('v_lshl_add_u32 v%d, v%d, 6, v%d' % (vT3, vT2, vT3))
    A('v_bfe_u32 v%d, v%d, 4, 1' % (vT2, vLANE))
    A('v_lshl_add_u32 v%d, v%d, 5, v%d' % (vT3, vT2, vT3))
    A('v_and_b32 v%d, 3, v%d' % (vT2, vLANE))
    A('v_lshl_add_u32 v%d, v%d, 3, v%d' % (vT3, vT2, vT3))
    for st in range(NSET):
        for a in range(2):
            c = (st * 65536) ^ 16384 ^ (a * 64)
            A('v_xor_b32 v%d, 0x%x, v%d' % (vAW + st * 2 + a, c, vT3))
    vSA = vAW + NSET * 2
    srd(SO, 22, 23, QKV_SZ, QKV_OFF)
    A('s_mul_i32 s%d, s%d, 205' % (sT0, sCT))
    A('s_lshr_b32 s%d, s%d, 10' % (sT0, sT0))
    A('s_mov_b32 s%d, 1.0' % sQS)
    A('s_cmp_eq_u32 s%d, 0' % sT0)
    A('s_cselect_b32 s%d, %s, s%d' % (sQS, f32(20 ** -0.5 * math.log2(math.e)), sQS))
    A('s_mul_i32 s%d, s%d, %d' % (sTB0, sT0, 32 * 64 * 1536))
    A('s_mul_i32 s%d, s%d, 5' % (sT0, sT0))
    A('s_sub_u32 s%d, s%d, s%d' % (sT0, sCT, sT0))
    A('s_lshl_b32 s%d, s%d, 5' % (sT0, sT0))
    A('s_lshl_b32 s%d, s%d, 4' % (sT1, sWN))
    A('s_add_u32 s%d, s%d, s%d' % (sT0, sT0, sT1))
    A('s_lshl_b32 s%d, s%d, 3' % (sT1, sWT))
    A('s_add_u32 s%d, s%d, s%d' % (sT0, sT0, sT1))
    for a in range(2):
        if a:
            A('s_xor_b32 s%d, s%d, 8' % (sT0, sT0))
        for rho in range(4):
            d = vSA + a * 4 + rho
            A('v_add3_u32 v%d, v%d, s%d, %d' % (vT2, vT1, sT0, 2 * rho))
            A('v_mul_u32_u24 v%d, 205, v%d' % (vT3, vT2))
            A('v_lshrrev_b32 v%d, 10, v%d' % (vT3, vT3))
            A('v_mul_u32_u24 v%d, 5, v%d' % (d, vT3))
            A('v_sub_u32 v%d, v%d, v%d' % (vT2, vT2, d))
            A('v_mul_u32_u24 v%d, %d, v%d' % (d, 64 * 1536, vT3))
            A('v_and_b32 v%d, 1, v%d' % (vT3, vT2))
            A('v_lshl_add_u32 v%d, v%d, 3, v%d' % (d, vT3, d))
            A('v_lshrrev_b32 v%d, 1, v%d' % (vT2, vT2))
            A('v_lshl_add_u32 v%d, v%d, 9, v%d' % (d, vT2, d))
            A('v_lshlrev_b32 v%d, 2, v%d' % (vT2, vT2))
            A('v_xor_b32 v%d, v%d, v%d' % (vT2, vT2, vT0))
            A('v_lshl_add_u32 v%d, v%d, 4, v%d' % (d, vT2, d))
    A('s_lshl_b32 s%d, s%d, 2' % (sT0, sRB))
    A('s_lshl_b32 s%d, s%d, 1' % (sT1, sWT))
    A('s_add_u32 s%d, s%d, s%d' % (sT0, sT0, sT1))
    A('s_add_u32 s%d, s%d, s%d' % (sT1, sT0, sWN))
    A('s_xor_b32 s%d, s%d, 1' % (sT0, sT1))
    A('s_mul_i32 s%d, s%d, 1536' % (sT1, sT1))
    A('s_mul_i32 s%d, s%d, 1536' % (sT0, sT0))
    A('s_add_u32 s%d, s%d, s%d' % (sTB1, sTB0, sT0))
    A('s_add_u32 s%d, s%d, s%d' % (sTB0, sTB0, sT1))
    vSEL = (vSA + 8 + 3) // 4 * 4
    vCS = vSEL + 4
    vST = vCS + 4
    vFX = (vST + 6 + 3) // 4 * 4
    vFW = vFX + 16
    vACC = vFW + 16
    A('v_lshrrev_b32 v%d, 2, v%d' % (vT2, vLANE))
    A('v_lshrrev_b32 v%d, 4, v%d' % (vT3, vLANE))
    A('v_xor_b32 v%d, v%d, v%d' % (vT2, vT2, vT3))
    A('v_and_b32 v%d, 1, v%d' % (vT2, vT2))
    A('v_cmp_eq_u32 vcc, 0, v%d' % vT2)
    A('v_mov_b32 v%d, 0x3f803f80' % vT3)
    A('v_cndmask_b32 v%d, 0, v%d, vcc' % (vSEL, vT3))
    for i in range(1, 4):
        A('v_mov_b32 v%d, v%d' % (vSEL + i, vSEL))
    for i in range(4):
        A('v_mov_b32 v%d, 0' % (vCS + i))
        A('v_mov_b32 v%d, 0' % (vST + i))

    def reads(s, ks, buf):
        slot = s % R; st = slot // 2; so = (slot % 2) * 32768
        out = []
        for b in range(2):
            out.append('ds_read_b128 %s, v%d offset:%d' % (vr(vFX + buf * 8 + b * 4, 4), vAX + st * 8 + b * 4 + ks, so))
        for a in range(2):
            for rd in range(2):
                out.append('ds_read_b64_tr_b16 %s, v%d offset:%d' % (vr(vFW + buf * 8 + a * 4 + rd * 2, 2), vAW + st * 2 + a, so + ks * 4096 + rd * 1024))
        return out
    def stats(buf):
        out = []
        s0, s1, q0, q1, t0, t1 = [vST + i for i in range(6)]
        for i in range(4):
            x = vFX + buf * 8 + i
            out += ['v_and_b32 v%d, s%d, v%d' % (t0, sMASK, x), 'v_lshlrev_b32 v%d, 16, v%d' % (t1, x),
                    'v_add_f32 v%d, v%d, v%d' % (s0, s0, t0), 'v_fmac_f32 v%d, v%d, v%d' % (q0, t0, t0),
                    'v_add_f32 v%d, v%d, v%d' % (s1, s1, t1), 'v_fmac_f32 v%d, v%d, v%d' % (q1, t1, t1)]
        return out
    def mfmas(buf, first):
        out = []
        for a in range(2):
            for b in range(2):
                acc = vr(vACC + (a * 2 + b) * 16, 16)
                out.append('v_mfma_f32_32x32x16_bf16 %s, %s, %s, %s' % (acc, vr(vFW + buf * 8 + a * 4, 4), vr(vFX + buf * 8 + b * 4, 4), '0' if first else acc))
        out.append('v_mfma_f32_16x16x32_bf16 %s, %s, %s, %s' % (vr(vCS, 4), vr(vSEL, 4), vr(vFW + buf * 8, 4), vr(vCS, 4)))
        return out
    def wait_stage(s):
        A('s_waitcnt vmcnt(%d) lgkmcnt(0)' % (issued[0] - stage_mark[s]))
        A('s_barrier')
    wait_stage(0)
    for r in reads(0, 0, 0):
        A(r)
    step = 0
    for s in range(NST):
        for ks in range(4):
            buf = step % 2
            nxt = None
            if ks < 3:
                nxt = reads(s, ks + 1, buf ^ 1)
                for r in nxt:
                    A(r)
                A('s_waitcnt lgkmcnt(6)')
            else:
                if s + 1 < NST:
                    wait_stage(s + 1)
                    for r in reads(s + 1, 0, buf ^ 1):
                        A(r)
                    if s + R < NST:
                        dma_stage(s + R)
                else:
                    A('s_waitcnt lgkmcnt(0)')
            mf = mfmas(buf, step == 0)
            stv = stats(buf)
            for i, m in enumerate(mf):
                A(m)
                for v in stv[i * 6:(i + 1) * 6]:
                    A(v)
            step += 1
    s0, s1, q0, q1, t0, t1 = [vST + i for i in range(6)]
    vBP = vFX
    vRS = vFX + 8
    vAP = vFW
    A('v_add_f32 v%d, v%d, v%d' % (s0, s0, s1))
    A('v_add_f32 v%d, v%d, v%d' % (q0, q0, q1))
    A('v_mov_b32 v%d, v%d' % (s1, s0))
    A('v_mov_b32 v%d, v%d' % (q1, q0))
    A('v_permlane32_swap_b32 v%d, v%d' % (s0, s1))
    A('v_permlane32_swap_b32 v%d, v%d' % (q0, q1))
    A('v_add_f32 v%d, v%d, v%d' % (s0, s0, s1))
    A('v_add_f32 v%d, v%d, v%d' % (q0, q0, q1))
    row_stats(s0, q0, s1, vRS, t0)
    A('v_mul_f32 v%d, s%d, v%d' % (vRS, sQS, vRS))
    A('v_cmp_gt_u32 vcc, 32, v%d' % vLANE)
    A('v_cndmask_b32 v%d, 0, v%d, vcc' % (s1, s1))
    A('v_perm_b32 v%d, v%d, v%d, s%d' % (vBP, s1, s1, sPERM))
    A('v_lshrrev_b32 v%d, 16, v%d' % (vBP + 1, s1))
    A('v_mov_b32 v%d, v%d' % (vBP + 2, vRS))
    A('v_mov_b32 v%d, 0' % (vBP + 3))
    split3(vAP, vCS, t0, t1, sPERM)
    EX = 2 * 32768
    A('v_lshlrev_b32 v%d, 4, v%d' % (vT0, vLANE))
    A('s_lshl_b32 s%d, s%d, 11' % (sT0, sW))
    A('s_add_u32 s%d, s%d, %d' % (sT0, sT0, EX))
    A('v_add_u32 v%d, s%d, v%d' % (vT0, sT0, vT0))
    A('ds_write_b128 v%d, %s' % (vT0, vr(vBP, 4)))
    A('ds_write_b128 v%d, %s offset:1024' % (vT0, vr(vAP, 4)))
    A('v_xor_b32 v%d, 0x800, v%d' % (vT1, vT0))
    A('v_xor_b32 v%d, 0x1000, v%d' % (vT2, vT0))
    A('s_waitcnt lgkmcnt(0)')
    A('s_barrier')
    A('ds_read_b128 %s, v%d' % (vr(vBP + 4, 4), vT1))
    A('ds_read_b128 %s, v%d offset:1024' % (vr(vAP + 4, 4), vT2))
    A('v_mov_b32 v%d, 0' % (vBP + 2))
    acc = vr(vACC, 16)
    A('v_mfma_f32_32x32x16_bf16 %s, %s, %s, %s' % (acc, vr(vAP, 4), vr(vBP, 4), acc))
    A('s_waitcnt lgkmcnt(0)')
    A('v_mov_b32 v%d, v%d' % (vRS + 1, vBP + 6))
    A('v_mov_b32 v%d, 0' % (vBP + 6))
    for a in range(2):
        for b in range(2):
            if a == 0 and b == 0:
                continue
            acc = vr(vACC + (a * 2 + b) * 16, 16)
            A('v_mfma_f32_32x32x16_bf16 %s, %s, %s, %s' % (acc, vr(vAP + a * 4, 4), vr(vBP + b * 4, 4), acc))
    for a in range(2):
        for b in range(2):
            base = vACC + (a * 2 + b) * 16
            for rho in range(4):
                r = base + rho * 4
                for i in range(4):
                    A('v_mul_f32 v%d, v%d, v%d' % (r + i, vRS + b, r + i))
                A('v_cvt_pk_bf16_f32 v%d, v%d, v%d' % (r, r, r + 1))
                A('v_cvt_pk_bf16_f32 v%d, v%d, v%d' % (r + 1, r + 2, r + 3))
                A('buffer_store_dwordx2 %s, v%d, s[%d:%d], s%d offen' % (vr(r, 2), vSA + a * 4 + rho, SO, SO + 3, sTB1 if b else sTB0))
    A('s_endpgm')

    A.label('L_k1_spare')
    A.hist = []
    SG = 32
    vCG, vRG, vOF = 2, 3, 4
    vS = 8
    vB = 16
    tA, tB = 5, 6
    A('v_mul_u32_u24 v%d, 2731, v0' % vRG)
    A('v_lshrrev_b32 v%d, 16, v%d' % (vRG, vRG))
    A('v_mul_u32_u24 v%d, 24, v%d' % (vCG, vRG))
    A('v_sub_u32 v%d, v0, v%d' % (vCG, vCG))
    A('v_mul_u32_u24 v%d, 3072, v%d' % (vOF, vRG))
    A('v_lshl_add_u32 v%d, v%d, 4, v%d' % (vOF, vCG, vOF))
    A('v_cmp_gt_u32 vcc, 240, v0')
    A('v_mov_b32 v%d, 0x7fffffff' % tA)
    A('v_cndmask_b32 v%d, v%d, v%d, vcc' % (vOF, tA, vOF))
    A('s_and_b32 s%d, s%d, 7' % (sT0, sRB))
    A('s_mul_i32 s%d, s%d, 384' % (sT0, sT0))
    A('s_waitcnt lgkmcnt(0)')
    A('s_cmp_ge_u32 s%d, 8' % sRB)
    A('s_cselect_b32 s%d, s14, s12' % SG)
    A('s_cselect_b32 s%d, s15, s13' % (SG + 1))
    A('s_mov_b32 s%d, 0x%x' % (SG + 2, 640 * 3072))
    A('s_mov_b32 s%d, 0x00020000' % (SG + 3))
    srd(SO, 22, 23, CF_SZ, CF_OFF)
    for i in range(8):
        A('v_mov_b32 v%d, 0' % (vS + i))
    def issue(buf):
        for i in range(16):
            A('buffer_load_dwordx4 %s, v%d, s[%d:%d], s%d offen' % (vr(vB + buf * 64 + i * 4, 4), vOF, SG, SG + 3, sT0))
            A('s_add_u32 s%d, s%d, %d' % (sT0, sT0, 10 * 3072))
    def process(buf):
        for i in range(16):
            for q in range(4):
                x = vB + buf * 64 + i * 4 + q
                A('v_lshlrev_b32 v%d, 16, v%d' % (tA, x))
                A('v_and_b32 v%d, s%d, v%d' % (tB, sMASK, x))
                A('v_add_f32 v%d, v%d, v%d' % (vS + 2 * q, vS + 2 * q, tA))
                A('v_add_f32 v%d, v%d, v%d' % (vS + 2 * q + 1, vS + 2 * q + 1, tB))
    issue(0); issue(1)
    A('s_mov_b32 s%d, 0' % sT1)
    A.label('L_k1_sp_loop')
    A('s_waitcnt vmcnt(16)')
    process(0)
    issue(0)
    A('s_waitcnt vmcnt(16)')
    process(1)
    issue(1)
    A('s_add_u32 s%d, s%d, 1' % (sT1, sT1))
    A('s_cmp_lt_u32 s%d, 2' % sT1)
    A('s_cbranch_scc1 L_k1_sp_loop')
    A('v_mul_u32_u24 v%d, 768, v%d' % (tA, vRG))
    A('v_lshl_add_u32 v%d, v%d, 5, v%d' % (tA, vCG, tA))
    A('ds_write_b128 v%d, %s' % (tA, vr(vS, 4)))
    A('ds_write_b128 v%d, %s offset:16' % (tA, vr(vS + 4, 4)))
    A('s_waitcnt vmcnt(0) lgkmcnt(0)')
    A('s_barrier')
    A('v_lshlrev_b32 v%d, 2, v0' % tA)
    for i in range(10):
        A('ds_read_b32 v%d, v%d offset:%d' % (vB + i, tA, i * 768))
    A('s_waitcnt lgkmcnt(0)')
    for i in range(1, 10):
        A('v_add_f32 v%d, v%d, v%d' % (vB, vB, vB + i))
    split3(vS, vB, tA, tB, sPERM)
    A('s_mul_i32 s%d, s%d, %d' % (sT0, sRB, 192 * 16))
    A('v_lshlrev_b32 v%d, 4, v0' % tA)
    A('v_cmp_gt_u32 vcc, 192, v0')
    A('v_mov_b32 v%d, 0x7fffffff' % tB)
    A('v_cndmask_b32 v%d, v%d, v%d, vcc' % (tA, tB, tA))
    A('buffer_store_dwordx4 %s, v%d, s[%d:%d], s%d offen' % (vr(vS, 4), tA, SO, SO + 3, sT0))
    A.label('L_k1_end')
    A('s_endpgm')
    end_kernel(L, 256, 256, R * 32768)

def k2():
    L = 'k2_attn_kernel'
    begin_kernel(L)
    sW, sX, sHD, sT0, sT1, sI0 = 24, 25, 26, 27, 28, 29
    SQ, SO = 32, 36
    sPERM, sNEG = 40, 41
    sINI = 44
    KOFF, VOFF, ONES = 0, 24576, 49152
    A('s_cmp_ge_u32 s2, 256')
    A('s_cbranch_scc1 L_k2_end')
    A('s_load_dwordx2 s[22:23], s[0:1], 72')
    vLANE, vT0, vT1, vT2, vT3, vT, vH = 1, 2, 3, 4, 5, 6, 7
    vAK, vAKT, vAV0, vAV1, vSO0, vSO1 = 8, 9, 10, 11, 12, 13
    vM0, vM1 = 14, 15
    vQ = 16
    vONE = 24
    vNM = 28
    vO = 32
    vKF = 48
    vS = 72
    A('v_lshrrev_b32 v%d, 6, v0' % vT0)
    A('v_and_b32 v%d, 63, v0' % vLANE)
    A('v_readfirstlane_b32 s%d, v%d' % (sW, vT0))
    A('s_and_b32 s%d, s2, 7' % sX)
    A('s_lshr_b32 s%d, s2, 3' % sHD)
    A('v_and_b32 v%d, 31, v%d' % (vT, vLANE))
    A('v_lshrrev_b32 v%d, 5, v%d' % (vH, vLANE))
    A('v_lshlrev_b32 v%d, 4, v%d' % (vT0, vLANE))
    A('s_mul_i32 s%d, s%d, %d' % (sT0, sHD, 64 * 1536))
    A('s_mul_i32 s%d, s%d, %d' % (sT1, sX, 8 * 1536))
    A('s_add_u32 s%d, s%d, s%d' % (sT0, sT0, sT1))
    A('s_mul_i32 s%d, s%d, 3072' % (sT1, sW))
    A('s_mov_b32 m0, s%d' % sT1)
    A('s_add_u32 s%d, s%d, s%d' % (sI0, sT0, sT1))
    A('s_add_u32 s%d, s%d, %d' % (sI0, sI0, 32 * 64 * 1536 - 8 * 1536))
    A('v_lshlrev_b32 v%d, 2, v%d' % (vT1, vH))
    A('v_xor_b32 v%d, v%d, v%d' % (vT1, vT1, vT))
    A('v_lshlrev_b32 v%d, 4, v%d' % (vT1, vT1))
    A('v_lshl_add_u32 v%d, v%d, 9, v%d' % (vAK, vH, vT1))
    A('v_xor_b32 v%d, 8, v%d' % (vT1, vT))
    A('v_lshlrev_b32 v%d, 4, v%d' % (vT1, vT1))
    A('v_add_u32 v%d, 1024, v%d' % (vAKT, vT1))
    A('v_lshl_add_u32 v%d, v%d, 30, v%d' % (vT2, vH, vAKT))
    A('s_mul_i32 s%d, s%d, 1536' % (sT1, sW))
    A('s_add_u32 s%d, s%d, s%d' % (sT0, sT0, sT1))
    A('s_waitcnt lgkmcnt(0)')
    srd(SQ, 22, 23, QKV_SZ, QKV_OFF)
    for j in range(3):
        A('buffer_load_dwordx4 v%d, s[%d:%d], s%d offen offset:%d lds' % (vT0, SQ, SQ + 3, sI0, 1024 * j))
    A('buffer_load_dwordx4 %s, v%d, s[%d:%d], s%d offen' % (vr(vQ, 4), vAK, SQ, SQ + 3, sT0))
    A('buffer_load_dwordx2 %s, v%d, s[%d:%d], s%d offen' % (vr(vQ + 4, 2), vT2, SQ, SQ + 3, sT0))
    A('s_add_u32 m0, m0, %d' % VOFF)
    A('s_add_u32 s%d, s%d, %d' % (sI0, sI0, 32 * 64 * 1536))
    for j in range(3):
        A('buffer_load_dwordx4 v%d, s[%d:%d], s%d offen offset:%d lds' % (vT0, SQ, SQ + 3, sI0, 1024 * j))
    for i in range(4):
        A('v_mov_b32 v%d, 0x3f803f80' % (vONE + i))
    A('s_lshl_b32 s%d, s%d, 11' % (sT0, sW))
    A('v_add_u32 v%d, s%d, v%d' % (vT0, sT0, vT0))
    A('ds_write_b128 v%d, %s offset:%d' % (vT0, vr(vONE, 4), ONES))
    A('ds_write_b128 v%d, %s offset:%d' % (vT0, vr(vONE, 4), ONES + 1024))
    A('v_add_u32 v%d, s%d, v%d' % (vAK, sT1, vAK))
    A('v_add_u32 v%d, s%d, v%d' % (vAKT, sT1, vAKT))
    A('v_bfe_u32 v%d, v%d, 4, 1' % (vT1, vLANE))
    A('v_and_b32 v%d, 3, v%d' % (vT2, vLANE))
    A('v_lshl_add_u32 v%d, v%d, 2, v%d' % (vT1, vT1, vT2))
    A('v_cmp_lt_u32 vcc, 4, v%d' % vT1)
    A('v_lshrrev_b32 v%d, 1, v%d' % (vT2, vT1))
    A('v_cndmask_b32 v%d, v%d, 3, vcc' % (vT2, vT2))
    A('v_xor_b32 v%d, v%d, v%d' % (vT3, vT2, vH))
    A('v_lshlrev_b32 v%d, 6, v%d' % (vT3, vT3))
    A('v_bfe_u32 v%d, v%d, 2, 2' % (vAV0, vLANE))
    A('v_lshl_add_u32 v%d, v%d, 4, v%d' % (vT3, vAV0, vT3))
    A('v_and_b32 v%d, 1, v%d' % (vT1, vT1))
    A('v_lshl_add_u32 v%d, v%d, 3, v%d' % (vT3, vT1, vT3))
    A('v_lshlrev_b32 v%d, 9, v%d' % (vT2, vT2))
    A('s_add_u32 s%d, s%d, %d' % (sT0, sT1, VOFF))
    A('v_add_u32 v%d, s%d, v%d' % (vT2, sT0, vT2))
    A('v_mov_b32 v%d, %d' % (vT1, ONES))
    A('v_cndmask_b32 v%d, v%d, v%d, vcc' % (vT2, vT2, vT1))
    A('v_add_u32 v%d, v%d, v%d' % (vAV0, vT2, vT3))
    A('v_xor_b32 v%d, 0x80, v%d' % (vT3, vT3))
    A('v_add_u32 v%d, v%d, v%d' % (vAV1, vT2, vT3))
    srd(SO, 22, 23, OF_SZ, OF_OFF)
    A('s_lshl_b32 s%d, s%d, 3' % (sT0, sX))
    A('s_add_u32 s%d, s%d, s%d' % (sT0, sT0, sW))
    A('s_sub_u32 s%d, 8, s%d' % (sI0, sT0))
    A('s_mul_i32 s%d, s%d, 40' % (sT0, sT0))
    A('s_add_u32 s%d, s%d, s%d' % (sT1, sT0, sHD))
    A('s_lshl_b32 s%d, s%d, 10' % (sT1, sT1))
    A('v_lshlrev_b32 v%d, 4, v%d' % (vT0, vLANE))
    A('v_add_u32 v%d, s%d, v%d' % (vSO0, sT1, vT0))
    A('s_lshr_b32 s%d, s%d, 2' % (sT1, sHD))
    A('s_add_u32 s%d, s%d, s%d' % (sT0, sT0, sT1))
    A('s_add_u32 s%d, s%d, 32' % (sT0, sT0))
    A('s_lshl_b32 s%d, s%d, 10' % (sT0, sT0))
    A('s_and_b32 s%d, s%d, 1' % (sT1, sHD))
    A('s_lshl_b32 s%d, s%d, 9' % (sT1, sT1))
    A('s_add_u32 s%d, s%d, s%d' % (sT0, sT0, sT1))
    A('s_and_b32 s%d, s%d, 2' % (sT1, sHD))
    A('s_lshl_b32 s%d, s%d, 2' % (sT1, sT1))
    A('s_add_u32 s%d, s%d, s%d' % (sT0, sT0, sT1))
    A('v_lshlrev_b32 v%d, 4, v%d' % (vT0, vT))
    A('v_add_u32 v%d, s%d, v%d' % (vSO1, sT0, vT0))
    A('v_lshl_add_u32 v%d, v%d, 30, v%d' % (vSO1, vH, vSO1))
    A('s_mov_b32 s%d, 0x07060302' % sPERM)
    A('s_mov_b32 s%d, %s' % (sNEG, f32(-1e30)))
    A('v_mov_b32 v%d, 0' % (vQ + 6))
    A('v_mov_b32 v%d, 0' % (vQ + 7))
    for c in range(3):
        A('v_mov_b32 v%d, 0' % (vKF + c * 8 + 6))
        A('v_mov_b32 v%d, 0' % (vKF + c * 8 + 7))
    for i in range(8):
        A('s_cmp_lt_i32 %d, s%d' % (i, sI0))
        A('s_cselect_b32 s%d, s%d, 0' % (sINI + i, sNEG))
    A('v_lshlrev_b32 v%d, 2, v%d' % (vT0, vH))
    A('v_sub_u32 v%d, v%d, v%d' % (vT0, vT, vT0))
    A('v_mov_b32 v%d, s%d' % (vT1, sNEG))
    A('v_mov_b32 v%d, s%d' % (vT2, sINI))
    for r in range(16):
        kl = 8 * (r // 4) + r % 4
        A('v_cmp_gt_i32 vcc, %d, v%d' % (kl, vT0))
        A('v_cndmask_b32 v%d, v%d, v%d, vcc' % (vS + r, vT1, vT2))
        A('v_cndmask_b32 v%d, 0, v%d, vcc' % (vS + 128 + r, vT1))
    for i in range(1, 8):
        for r in range(16):
            A('v_mov_b32 v%d, s%d' % (vS + 16 * i + r, sINI + i))
    A('s_waitcnt vmcnt(3) lgkmcnt(0)')
    A('s_barrier')
    def kread(i):
        c = i % 3
        A('ds_read_b128 %s, v%d offset:%d' % (vr(vKF + c * 8, 4), vAK, KOFF + i * 1536))
        A('ds_read_b64 %s, v%d offset:%d' % (vr(vKF + c * 8 + 4, 2), vAKT, KOFF + i * 1536))
    def maxblk(i):
        b = vS + 16 * i
        out = []
        if i == 0:
            out.append('v_max3_f32 v%d, v%d, v%d, v%d' % (vM0, b, b + 1, b + 2))
            out.append('v_max3_f32 v%d, v%d, v%d, v%d' % (vM1, b + 3, b + 4, b + 5))
            rest = list(range(6, 16))
        else:
            rest = list(range(16))
        for k in range(0, len(rest), 2):
            m = vM0 if (k // 2) % 2 == 0 else vM1
            out.append('v_max3_f32 v%d, v%d, v%d, v%d' % (m, b + rest[k], b + rest[k + 1], m))
        return out
    kread(0); kread(1)
    for i in range(9):
        if i + 2 < 9:
            kread(i + 2)
            A('s_waitcnt lgkmcnt(4)')
        elif i + 1 < 9:
            A('s_waitcnt lgkmcnt(2)')
        else:
            A('s_waitcnt lgkmcnt(0)')
        c = i % 3
        S = vr(vS + 16 * i, 16)
        mx = maxblk(i - 2) if i >= 2 else []
        A('v_mfma_f32_32x32x16_bf16 %s, %s, %s, %s' % (S, vr(vKF + c * 8, 4), vr(vQ, 4), S))
        for m in mx[:4]:
            A(m)
        A('v_mfma_f32_32x32x16_bf16 %s, %s, %s, %s' % (S, vr(vKF + c * 8 + 4, 4), vr(vQ + 4, 4), S))
        for m in mx[4:]:
            A(m)
    A('s_waitcnt vmcnt(0)')
    A('s_barrier')
    def vread(i):
        c = i % 2
        for mu in range(2):
            A('ds_read_b64_tr_b16 %s, v%d offset:%d' % (vr(vKF + c * 8 + mu * 4, 2), vAV0, i * 1536 + mu * 256))
            A('ds_read_b64_tr_b16 %s, v%d offset:%d' % (vr(vKF + c * 8 + mu * 4 + 2, 2), vAV1, i * 1536 + mu * 256))
    for m in maxblk(7):
        A(m)
    vread(0)
    for m in maxblk(8):
        A(m)
    A('v_max_f32 v%d, v%d, v%d' % (vM0, vM0, vM1))
    A('v_mov_b32 v%d, v%d' % (vM1, vM0))
    A('v_permlane32_swap_b32 v%d, v%d' % (vM0, vM1))
    A('v_max_f32 v%d, v%d, v%d' % (vM0, vM0, vM1))
    A('v_cmp_gt_u32 vcc, 32, v%d' % vLANE)
    A('v_cndmask_b32 v%d, 0, -v%d, vcc' % (vM0, vM0))
    split3(vNM, vM0, vT0, vT1, sPERM)
    def sub(i):
        S = vr(vS + 16 * i, 16)
        A('v_mfma_f32_32x32x16_bf16 %s, %s, %s, %s' % (S, vr(vONE, 4), vr(vNM, 4), S))
    sub(0); sub(1)
    for i in range(9):
        b = vS + 16 * i
        if i + 1 < 9:
            vread(i + 1)
        for h in range(2):
            for r in range(8):
                A('v_exp_f32 v%d, v%d' % (b + 8 * h + r, b + 8 * h + r))
            if h == 0 and i + 2 < 9:
                sub(i + 2)
            for r in range(4):
                A('v_cvt_pk_bf16_f32 v%d, v%d, v%d' % (b + 8 * h + r, b + 8 * h + 2 * r, b + 8 * h + 2 * r + 1))
            if h == 0:
                A('s_waitcnt lgkmcnt(%d)' % (4 if i + 1 < 9 else 0))
            O = vr(vO, 16)
            A('v_mfma_f32_32x32x16_bf16 %s, %s, %s, %s' % (O, vr(vKF + (i % 2) * 8 + h * 4, 4), vr(b + 8 * h, 4), '0' if (i == 0 and h == 0) else O))
    A('v_rcp_f32 v%d, v%d' % (vT0, vO + 12))
    for r in range(12):
        A('v_mul_f32 v%d, v%d, v%d' % (vO + r, vT0, vO + r))
    for r in range(6):
        A('v_cvt_pk_bf16_f32 v%d, v%d, v%d' % (vO + r, vO + 2 * r, vO + 2 * r + 1))
    A('buffer_store_dwordx4 %s, v%d, s[%d:%d], 0 offen' % (vr(vO, 4), vSO0, SO, SO + 3))
    A('buffer_store_dwordx2 %s, v%d, s[%d:%d], 0 offen' % (vr(vO + 4, 2), vSO1, SO, SO + 3))
    A.label('L_k2_end')
    A('s_endpgm')
    end_kernel(L, 256, 512, ONES + 16384)

def k35(which):
    is3 = which == 3
    L = 'k3_wo_kernel' if is3 else 'k5_down_kernel'
    P = 'L_k%d' % which
    begin_kernel(L)
    NS = 5 if is3 else 12
    NKB = 40 if is3 else 96
    RING = 5 if is3 else 8
    DEPTH = 5 if is3 else 6
    WREG = RING * 5120
    sW, sTM, sCN, sT0, sT1, sM, sWo, sXo = 24, 25, 26, 27, 28, 29, 30, 31
    SX, SWt, SR, SO, SS = 32, 36, 40, 44, 48
    sMASK = 52
    A('s_cmp_ge_u32 s2, 256')
    A('s_cbranch_scc1 %s_end' % P)
    if is3:
        A('s_load_dwordx2 s[4:5], s[0:1], 0')
        A('s_load_dwordx2 s[8:9], s[0:1], 16')
    else:
        A('s_load_dwordx4 s[16:19], s[0:1], 48')
    A('s_load_dwordx2 s[22:23], s[0:1], 72')
    vLANE, vT0, vT1, vT2, vT3 = 1, 2, 3, 4, 5
    vDW = 6
    vAX, vAW, vAWT, vRA, vOA = 11, 12, 13, 14, 15
    vRES = 16
    vFW = 28
    vACC = 68
    vFX = 148
    A('v_lshrrev_b32 v%d, 6, v0' % vT0)
    A('v_and_b32 v%d, 63, v0' % vLANE)
    A('v_readfirstlane_b32 s%d, v%d' % (sW, vT0))
    A('s_and_b32 s%d, s2, 7' % sT0)
    A('s_lshr_b32 s%d, s2, 3' % sT1)
    A('s_lshl_b32 s%d, s%d, 2' % (sTM, sT0))
    A('s_and_b32 s%d, s%d, 3' % (sT0, sT1))
    A('s_add_u32 s%d, s%d, s%d' % (sTM, sTM, sT0))
    A('s_lshr_b32 s%d, s%d, 2' % (sCN, sT1))
    A('s_mul_i32 s%d, s%d, 160' % (sT0, sCN))
    for j in range(5):
        A('v_add_u32 v%d, %d, v%d' % (vT0, 64 * j, vLANE))
        A('v_mul_u32_u24 v%d, 6554, v%d' % (vT1, vT0))
        A('v_lshrrev_b32 v%d, 16, v%d' % (vT1, vT1))
        A('v_mul_u32_u24 v%d, %d, v%d' % (vT2, 1280 - 160, vT1))
        A('v_lshl_add_u32 v%d, v%d, 4, v%d' % (vT2, vT0, vT2))
        if j < 4:
            A('v_add3_u32 v%d, v%d, s%d, %d' % (vDW + j, vT2, sT0, 0))
            if j:
                A('v_subrev_u32 v%d, %d, v%d' % (vDW + j, 1024 * j, vDW + j))
        else:
            A('v_add_u32 v%d, s%d, v%d' % (vDW + j, sT0, vT2))
    A('s_mul_i32 s%d, s%d, %d' % (sWo, sW, NS * 32 * 1280))
    A('s_mul_i32 s%d, s%d, %d' % (sM, sW, WREG))
    A('v_and_b32 v%d, 15, v%d' % (vT0, vLANE))
    A('v_lshrrev_b32 v%d, 4, v%d' % (vT1, vLANE))
    A('v_lshlrev_b32 v%d, 4, v%d' % (vAX, vT0))
    A('v_lshl_add_u32 v%d, v%d, 9, v%d' % (vAX, vT1, vAX))
    A('s_mul_i32 s%d, s%d, %d' % (sXo, sTM, 2 * NKB * 1024))
    A('s_waitcnt lgkmcnt(0)')
    if is3:
        srd(SX, 22, 23, OF_SZ, OF_OFF)
        srd(SWt, 8, 9, 640 * 1280)
    else:
        srd(SX, 22, 23, GF_SZ, GF_OFF)
        srd(SWt, 16, 17, 1536 * 1280)
    issued = [0]; mark = {}
    def load_step(p):
        slot = p % RING
        A('s_add_u32 m0, s%d, %d' % (sM, slot * 5120))
        if is3:
            if p < 4:
                A('s_lshl_b32 s%d, s%d, 13' % (sT0, sW))
                A('s_add_u32 s%d, s%d, %d' % (sT0, sT0, 2 * p * 1024))
            else:
                A('s_lshl_b32 s%d, s%d, 11' % (sT0, sW))
                A('s_add_u32 s%d, s%d, %d' % (sT0, sT0, 32 * 1024))
        else:
            A('s_mul_i32 s%d, s%d, %d' % (sT0, sW, 24 * 1024))
            A('s_add_u32 s%d, s%d, %d' % (sT0, sT0, 2 * p * 1024))
        A('s_add_u32 s%d, s%d, s%d' % (sT0, sT0, sXo))
        A('s_add_u32 s%d, s%d, %d' % (sT1, sT0, NKB * 1024))
        for j in range(4):
            A('buffer_load_dwordx4 v%d, s[%d:%d], s%d offen offset:%d lds' % (vDW + j, SWt, SWt + 3, sWo, 1024 * j))
        A('s_add_u32 m0, s%d, %d' % (sM, slot * 5120 + 4096))
        xb = vFX + (p % DEPTH) * 16
        A('buffer_load_dwordx4 %s, v%d, s[%d:%d], s%d offen' % (vr(xb, 4), vAX, SX, SX + 3, sT0))
        A('buffer_load_dwordx4 v%d, s[%d:%d], s%d offen lds' % (vDW + 4, SWt, SWt + 3, sWo))
        A('buffer_load_dwordx4 %s, v%d, s[%d:%d], s%d offen offset:256' % (vr(xb + 4, 4), vAX, SX, SX + 3, sT0))
        A('buffer_load_dwordx4 %s, v%d, s[%d:%d], s%d offen' % (vr(xb + 8, 4), vAX, SX, SX + 3, sT1))
        A('buffer_load_dwordx4 %s, v%d, s[%d:%d], s%d offen offset:256' % (vr(xb + 12, 4), vAX, SX, SX + 3, sT1))
        A('s_add_u32 s%d, s%d, %d' % (sWo, sWo, 32 * 1280))
        issued[0] += 9
        mark[p] = issued[0]
    for p in range(DEPTH):
        load_step(p)
    A('s_lshl_b32 s%d, s%d, 6' % (sT0, sTM))
    A('s_lshl_b32 s%d, s%d, 4' % (sT1, sW))
    A('s_add_u32 s%d, s%d, s%d' % (sT0, sT0, sT1))
    A('v_add_u32 v%d, s%d, v%d' % (vT2, sT0, vT0))
    A('v_mul_u32_u24 v%d, 1280, v%d' % (vT3, vT2))
    A('v_lshl_add_u32 v%d, v%d, 3, v%d' % (vT3, vT1, vT3))
    A('s_mul_i32 s%d, s%d, 160' % (sT0, sCN))
    rowmaj = vRA if is3 else vOA
    fm = vOA if is3 else vRA
    A('v_add_u32 v%d, s%d, v%d' % (rowmaj, sT0, vT3))
    A('s_lshl_b32 s%d, s%d, 1' % (sT0, sTM))
    A('s_lshr_b32 s%d, s%d, 1' % (sT1, sW))
    A('s_add_u32 s%d, s%d, s%d' % (sT0, sT0, sT1))
    A('s_mul_i32 s%d, s%d, 40' % (sT0, sT0))
    A('s_mul_i32 s%d, s%d, 5' % (sT1, sCN))
    A('s_add_u32 s%d, s%d, s%d' % (sT0, sT0, sT1))
    A('s_lshl_b32 s%d, s%d, 10' % (sT0, sT0))
    A('s_and_b32 s%d, s%d, 1' % (sT1, sW))
    A('s_lshl_b32 s%d, s%d, 8' % (sT1, sT1))
    A('s_add_u32 s%d, s%d, s%d' % (sT0, sT0, sT1))
    A('v_and_b32 v%d, 1, v%d' % (vT3, vT1))
    A('v_lshlrev_b32 v%d, 9, v%d' % (vT3, vT3))
    A('v_lshl_add_u32 v%d, v%d, 4, v%d' % (vT3, vT0, vT3))
    A('v_lshrrev_b32 v%d, 1, v%d' % (fm, vT1))
    A('v_lshl_add_u32 v%d, v%d, 3, v%d' % (vT3, fm, vT3))
    A('v_add_u32 v%d, s%d, v%d' % (fm, sT0, vT3))
    if is3:
        srd(SR, 4, 5, 2048 * 1280)
        srd(SO, 22, 23, HF_SZ, HF_OFF)
        srd(SS, 22, 23, SP_SZ, SP_OFF)
        for j in range(5):
            A('buffer_load_dwordx2 %s, v%d, s[%d:%d], 0 offen offset:%d' % (vr(vRES + 2 * j, 2), vRA, SR, SR + 3, 32 * j))
    else:
        srd(SR, 22, 23, HF_SZ, HF_OFF)
        srd(SO, 18, 19, 2048 * 1280)
        A('s_movk_i32 s%d, 0x1000' % sT1)
        for j in range(5):
            if j < 4:
                A('buffer_load_dwordx2 %s, v%d, s[%d:%d], 0 offen offset:%d' % (vr(vRES + 2 * j, 2), vRA, SR, SR + 3, 1024 * j))
            else:
                A('buffer_load_dwordx2 %s, v%d, s[%d:%d], s%d offen' % (vr(vRES + 2 * j, 2), vRA, SR, SR + 3, sT1))
    issued[0] += 5
    RB = 20 if is3 else 16
    A('v_lshrrev_b32 v%d, 1, v%d' % (vT2, vT1))
    A('v_and_b32 v%d, 1, v%d' % (vT3, vT1))
    A('v_mul_u32_u24 v%d, %d, v%d' % (vAW, RB, vT2))
    A('v_lshl_add_u32 v%d, v%d, 2, v%d' % (vAW, vT3, vAW))
    A('v_lshrrev_b32 v%d, 2, v%d' % (vT1, vT0))
    A('v_add_u32 v%d, v%d, v%d' % (vAW, vAW, vT1))
    A('v_mul_u32_u24 v%d, 160, v%d' % (vAW, vAW))
    A('v_and_b32 v%d, 3, v%d' % (vT0, vT0))
    A('v_lshlrev_b32 v%d, 3, v%d' % (vT0, vT0))
    A('v_add3_u32 v%d, v%d, v%d, s%d' % (vAW, vAW, vT0, sM))
    if is3:
        A('v_lshl_add_u32 v%d, v%d, 2, v%d' % (vAWT, vT2, vT3))
        A('v_mul_u32_u24 v%d, 20, v%d' % (vAWT, vAWT))
        A('v_add3_u32 v%d, v%d, v%d, 16' % (vAWT, vAWT, vT1))
        A('v_mul_u32_u24 v%d, 160, v%d' % (vAWT, vAWT))
        A('v_add3_u32 v%d, v%d, v%d, s%d' % (vAWT, vAWT, vT0, sM))
    A('s_mov_b32 s%d, 0xffff0000' % sMASK)

    def need_mark(p):
        if is3:
            if p < 4:
                last_row = 40 * p + 35
                return max(mark[p], mark[last_row // 32])
            return mark[4]
        return mark[p]
    def wreads(p, buf):
        out = []
        for j in range(5):
            for rd in range(2):
                if is3 and p == 4:
                    a, off = vAWT, rd * 6400 + 32 * j
                elif is3:
                    a, off = vAW, p * 6400 + rd * 1280 + 32 * j
                else:
                    a, off = vAW, (p % RING) * 5120 + rd * 1280 + 32 * j
                out.append('ds_read_b64_tr_b16 %s, v%d offset:%d' % (vr(vFW + buf * 20 + j * 4 + rd * 2, 2), a, off))
        return out
    A('s_waitcnt vmcnt(%d)' % (issued[0] - need_mark(0)))
    for r in wreads(0, 0):
        A(r)
    for p in range(NS):
        buf = p % 2
        nx = []
        if p + 1 < NS:
            A('s_waitcnt vmcnt(%d)' % (issued[0] - need_mark(p + 1)))
            nx = wreads(p + 1, buf ^ 1)
        A('s_waitcnt lgkmcnt(0)')
        xb = vFX + (p % DEPTH) * 16
        k = 0
        for j in range(5):
            for ts in range(4):
                acc = vr(vACC + (ts * 5 + j) * 4, 4)
                A('v_mfma_f32_16x16x32_bf16 %s, %s, %s, %s' % (acc, vr(vFW + buf * 20 + j * 4, 4), vr(xb + ts * 4, 4), '0' if p == 0 else acc))
                if k < len(nx):
                    A(nx[k]); k += 1
        if p + DEPTH < NS:
            load_step(p + DEPTH)
    A('v_lshlrev_b32 v%d, 4, v%d' % (vT0, vLANE))
    A('v_add_u32 v%d, s%d, v%d' % (vT1, sM, vT0))
    for t in range(20):
        A('ds_write_b128 v%d, %s offset:%d' % (vT1, vr(vACC + t * 4, 4), t * 1024))
    A('s_mul_i32 s%d, s%d, 5120' % (sT0, sW))
    A('v_add_u32 v%d, s%d, v%d' % (vT1, sT0, vT0))
    A('v_add_u32 v%d, %d, v%d' % (vT2, 2 * WREG, vT1))
    A('s_waitcnt lgkmcnt(0)')
    A('s_barrier')
    for j in range(5):
        for sw in range(4):
            A('ds_read_b128 %s, v%d offset:%d' % (vr(vACC + (sw * 5 + j) * 4, 4), vT1 if sw < 2 else vT2, (sw % 2) * WREG + j * 1024))
    A('s_waitcnt vmcnt(0)')
    vSUM, vSQ = vFW, vFW + 1
    tA, tB = vFW + 2, vFW + 3
    for j in range(5):
        A('s_waitcnt lgkmcnt(%d)' % min(15, 4 * (4 - j)))
        o = vACC + j * 4
        for i in range(4):
            A('v_add_f32 v%d, v%d, v%d' % (o + i, o + i, o + 20 + i))
            A('v_add_f32 v%d, v%d, v%d' % (o + 40 + i, o + 40 + i, o + 60 + i))
            A('v_add_f32 v%d, v%d, v%d' % (o + i, o + i, o + 40 + i))
        A('v_cvt_pk_bf16_f32 v%d, v%d, v%d' % (o + 20, o, o + 1))
        A('v_cvt_pk_bf16_f32 v%d, v%d, v%d' % (o + 21, o + 2, o + 3))
        for q in range(2):
            A('v_lshlrev_b32 v%d, 16, v%d' % (o + 2 * q, o + 20 + q))
            A('v_and_b32 v%d, s%d, v%d' % (o + 2 * q + 1, sMASK, o + 20 + q))
            A('v_lshlrev_b32 v%d, 16, v%d' % (tA, vRES + 2 * j + q))
            A('v_and_b32 v%d, s%d, v%d' % (tB, sMASK, vRES + 2 * j + q))
            A('v_add_f32 v%d, v%d, v%d' % (o + 2 * q, o + 2 * q, tA))
            A('v_add_f32 v%d, v%d, v%d' % (o + 2 * q + 1, o + 2 * q + 1, tB))
        A('v_cvt_pk_bf16_f32 v%d, v%d, v%d' % (o + 40, o, o + 1))
        A('v_cvt_pk_bf16_f32 v%d, v%d, v%d' % (o + 41, o + 2, o + 3))
        if is3:
            if j < 4:
                A('buffer_store_dwordx2 %s, v%d, s[%d:%d], 0 offen offset:%d' % (vr(o + 40, 2), vOA, SO, SO + 3, 1024 * j))
            else:
                A('s_movk_i32 s%d, 0x1000' % sT1)
                A('buffer_store_dwordx2 %s, v%d, s[%d:%d], s%d offen' % (vr(o + 40, 2), vOA, SO, SO + 3, sT1))
            for q in range(2):
                A('v_lshlrev_b32 v%d, 16, v%d' % (tA, o + 40 + q))
                A('v_and_b32 v%d, s%d, v%d' % (tB, sMASK, o + 40 + q))
                if j == 0 and q == 0:
                    A('v_add_f32 v%d, v%d, v%d' % (vSUM, tA, tB))
                    A('v_mul_f32 v%d, v%d, v%d' % (vSQ, tA, tA))
                else:
                    A('v_add_f32 v%d, v%d, v%d' % (vSUM, vSUM, tA))
                    A('v_fmac_f32 v%d, v%d, v%d' % (vSQ, tA, tA))
                    A('v_add_f32 v%d, v%d, v%d' % (vSUM, vSUM, tB))
                A('v_fmac_f32 v%d, v%d, v%d' % (vSQ, tB, tB))
        else:
            A('buffer_store_dwordx2 %s, v%d, s[%d:%d], 0 offen offset:%d' % (vr(o + 40, 2), vOA, SO, SO + 3, 32 * j))
    if is3:
        for sw in ('v_permlane32_swap_b32', 'v_permlane16_swap_b32'):
            A('v_mov_b32 v%d, v%d' % (tA, vSUM))
            A('v_mov_b32 v%d, v%d' % (tB, vSQ))
            A('%s v%d, v%d' % (sw, vSUM, tA))
            A('%s v%d, v%d' % (sw, vSQ, tB))
            A('v_add_f32 v%d, v%d, v%d' % (vSUM, vSUM, tA))
            A('v_add_f32 v%d, v%d, v%d' % (vSQ, vSQ, tB))
        A('s_lshl_b32 s%d, s%d, 6' % (sT0, sTM))
        A('s_lshl_b32 s%d, s%d, 4' % (sT1, sW))
        A('s_add_u32 s%d, s%d, s%d' % (sT0, sT0, sT1))
        A('s_lshl_b32 s%d, s%d, 6' % (sT0, sT0))
        A('s_lshl_b32 s%d, s%d, 3' % (sT1, sCN))
        A('s_add_u32 s%d, s%d, s%d' % (sT0, sT0, sT1))
        A('v_lshlrev_b32 v%d, 6, v%d' % (vT0, vLANE))
        A('v_lshrrev_b32 v%d, 4, v%d' % (vT1, vLANE))
        A('v_lshl_add_u32 v%d, v%d, 28, v%d' % (vT0, vT1, vT0))
        A('buffer_store_dwordx2 %s, v%d, s[%d:%d], s%d offen' % (vr(vSUM, 2), vT0, SS, SS + 3, sT0))
    A.label('%s_end' % P)
    A('s_endpgm')
    end_kernel(L, 256, 256, 4 * WREG)

def k4():
    L = 'k4_gu_kernel'
    begin_kernel(L)
    R = 6; NST = 10; SLOT = 24576
    sW, sRB, sCF, sT0, sT1, sM, sWo, sXo = 24, 25, 26, 27, 28, 29, 30, 31
    SX, SWt, SO, SS, SC = 32, 36, 40, 44, 48
    sPERM = 52
    A('s_cmp_ge_u32 s2, 256')
    A('s_cbranch_scc1 L_k4_end')
    A('s_load_dwordx4 s[12:15], s[0:1], 32')
    A('s_load_dwordx2 s[22:23], s[0:1], 72')
    vLANE, vT0, vT1, vT2, vT3 = 1, 2, 3, 4, 5
    vDW = 6
    vL16 = 12
    vAW = 13
    vSTAT = 16
    vAP = 32
    vFW = 56
    vFX = 104
    A('v_lshrrev_b32 v%d, 6, v0' % vT0)
    A('v_and_b32 v%d, 63, v0' % vLANE)
    A('v_readfirstlane_b32 s%d, v%d' % (sW, vT0))
    A('s_and_b32 s%d, s2, 7' % sT0)
    A('s_lshr_b32 s%d, s2, 3' % sT1)
    A('s_lshl_b32 s%d, s%d, 1' % (sRB, sT0))
    A('s_and_b32 s%d, s%d, 1' % (sT0, sT1))
    A('s_add_u32 s%d, s%d, s%d' % (sRB, sRB, sT0))
    A('s_lshr_b32 s%d, s%d, 1' % (sCF, sT1))
    A('s_mul_i32 s%d, s%d, 192' % (sT0, sCF))
    A('s_and_b32 s%d, s%d, 1' % (sT1, sW))
    A('s_mul_i32 s%d, s%d, %d' % (sT1, sT1, 32 * 3072))
    A('s_add_u32 s%d, s%d, s%d' % (sT0, sT0, sT1))
    for j in range(6):
        A('v_add_u32 v%d, %d, v%d' % (vT0, 64 * j, vLANE))
        A('v_mul_u32_u24 v%d, 5462, v%d' % (vT1, vT0))
        A('v_lshrrev_b32 v%d, 16, v%d' % (vT1, vT1))
        A('v_mul_u32_u24 v%d, %d, v%d' % (vT2, 3072 - 192, vT1))
        A('v_lshl_add_u32 v%d, v%d, 4, v%d' % (vT2, vT0, vT2))
        A('v_add_u32 v%d, s%d, v%d' % (vDW + j, sT0, vT2))
        if j % 3:
            A('v_subrev_u32 v%d, %d, v%d' % (vDW + j, 1024 * (j % 3), vDW + j))
    A('s_mul_i32 s%d, s%d, 6144' % (sM, sW))
    A('s_mov_b32 s%d, 0' % sWo)
    A('v_lshlrev_b32 v%d, 4, v%d' % (vL16, vLANE))
    A('s_lshl_b32 s%d, s%d, 2' % (sT0, sRB))
    A('s_add_u32 s%d, s%d, s%d' % (sT0, sT0, sW))
    A('s_mul_i32 s%d, s%d, %d' % (sXo, sT0, 40 * 1024))
    A('s_waitcnt lgkmcnt(0)')
    A('s_cmp_ge_u32 s%d, 2' % sW)
    A('s_cselect_b32 s%d, s14, s12' % SWt)
    A('s_cselect_b32 s%d, s15, s13' % (SWt + 1))
    A('s_mov_b32 s%d, 0x%x' % (SWt + 2, 640 * 3072))
    A('s_mov_b32 s%d, 0x00020000' % (SWt + 3))
    srd(SX, 22, 23, HF_SZ, HF_OFF)
    issued = [0]; mark = {}
    def load_stage(s):
        slot = s % R
        A('s_add_u32 m0, s%d, %d' % (sM, slot * SLOT))
        xb = vFX + slot * 16
        A('buffer_load_dwordx4 %s, v%d, s[%d:%d], s%d offen' % (vr(xb, 4), vL16, SX, SX + 3, sXo))
        for j in range(3):
            A('buffer_load_dwordx4 v%d, s[%d:%d], s%d offen offset:%d lds' % (vDW + j, SWt, SWt + 3, sWo, 1024 * j))
        A('s_add_u32 m0, s%d, %d' % (sM, slot * SLOT + 3072))
        A('buffer_load_dwordx4 %s, v%d, s[%d:%d], s%d offen offset:1024' % (vr(xb + 4, 4), vL16, SX, SX + 3, sXo))
        for j in range(3):
            A('buffer_load_dwordx4 v%d, s[%d:%d], s%d offen offset:%d lds' % (vDW + 3 + j, SWt, SWt + 3, sWo, 1024 * j))
        A('buffer_load_dwordx4 %s, v%d, s[%d:%d], s%d offen offset:2048' % (vr(xb + 8, 4), vL16, SX, SX + 3, sXo))
        A('buffer_load_dwordx4 %s, v%d, s[%d:%d], s%d offen offset:3072' % (vr(xb + 12, 4), vL16, SX, SX + 3, sXo))
        A('s_add_u32 s%d, s%d, 4096' % (sXo, sXo))
        A('s_add_u32 s%d, s%d, %d' % (sWo, sWo, 64 * 3072))
        issued[0] += 10
        mark[s] = issued[0]
    PRE = 5
    for s in range(PRE):
        load_stage(s)
    srd(SS, 22, 23, SP_SZ, SP_OFF)
    srd(SC, 22, 23, CF_SZ, CF_OFF)
    srd(SO, 22, 23, GF_SZ, GF_OFF)
    A('v_and_b32 v%d, 31, v%d' % (vT0, vLANE))
    A('v_lshlrev_b32 v%d, 6, v%d' % (vT1, vT0))
    A('s_lshl_b32 s%d, s%d, 11' % (sT0, sT0))
    for q in range(4):
        A('buffer_load_dwordx4 %s, v%d, s[%d:%d], s%d offen offset:%d' % (vr(vSTAT + 4 * q, 4), vT1, SS, SS + 3, sT0, 16 * q))
    A('v_lshlrev_b32 v%d, 4, v%d' % (vT1, vT0))
    A('s_mul_i32 s%d, s%d, 1536' % (sT0, sCF))
    A('s_add_u32 s%d, s%d, %d' % (sT1, sT0, 48 * 512))
    for q in range(6):
        A('buffer_load_dwordx4 %s, v%d, s[%d:%d], s%d offen offset:%d' % (vr(vAP + 4 * q, 4), vT1, SC, SC + 3, sT0 if q < 3 else sT1, 512 * (q % 3)))
    issued[0] += 10
    extra_mark = issued[0]
    A('v_lshrrev_b32 v%d, 5, v%d' % (vT1, vLANE))
    A('v_bfe_u32 v%d, v%d, 2, 2' % (vT2, vLANE))
    A('v_lshl_add_u32 v%d, v%d, 2, v%d' % (vT2, vT1, vT2))
    A('v_mul_u32_u24 v%d, 192, v%d' % (vT2, vT2))
    A('v_bfe_u32 v%d, v%d, 4, 1' % (vT3, vLANE))
    A('v_lshl_add_u32 v%d, v%d, 5, v%d' % (vT2, vT3, vT2))
    A('v_and_b32 v%d, 3, v%d' % (vT3, vLANE))
    A('v_lshl_add_u32 v%d, v%d, 3, v%d' % (vAW, vT3, vT2))
    A('v_add_u32 v%d, %d, v%d' % (vAW + 1, 2 * SLOT, vAW))
    A('v_add_u32 v%d, %d, v%d' % (vAW + 2, 4 * SLOT, vAW))
    A('s_mov_b32 s%d, 0x07060302' % sPERM)

    def reads(s, ks, buf):
        slot = s % R
        out = []
        for q in range(6):
            for rd in range(2):
                off = (slot % 2) * SLOT + (q // 3) * 12288 + (16 * ks + 8 * rd) * 192 + (q % 3) * 64
                out.append('ds_read_b64_tr_b16 %s, v%d offset:%d' % (vr(vFW + buf * 24 + q * 4 + rd * 2, 2), vAW + slot // 2, off))
        return out
    def wait_stage(s):
        A('s_waitcnt vmcnt(%d) lgkmcnt(0)' % min(63, issued[0] - mark[s]))
        A('s_barrier')
    wait_stage(0)
    for r in reads(0, 0, 0):
        A(r)
    step = 0
    for s in range(NST):
        for ks in range(4):
            buf = step % 2
            nx = []
            if ks < 3:
                A('s_waitcnt lgkmcnt(0)')
                nx = reads(s, ks + 1, buf ^ 1)
            elif s + 1 < NST:
                wait_stage(s + 1)
                nx = reads(s + 1, 0, buf ^ 1)
            else:
                A('s_waitcnt lgkmcnt(0)')
            xb = vFX + (s % R) * 16 + ks * 4
            for q in range(6):
                acc = ar(q * 16, 16)
                A('v_mfma_f32_32x32x16_bf16 %s, %s, %s, %s' % (acc, vr(vFW + buf * 24 + q * 4, 4), vr(xb, 4), '0' if step == 0 else acc))
                for r in nx[2 * q:2 * q + 2]:
                    A(r)
            if ks == 0 and s + PRE < NST:
                load_stage(s + PRE)
            step += 1
    A('s_waitcnt vmcnt(0)')
    for q in range(1, 8):
        A('v_add_f32 v%d, v%d, v%d' % (vSTAT, vSTAT, vSTAT + 2 * q))
        A('v_add_f32 v%d, v%d, v%d' % (vSTAT + 1, vSTAT + 1, vSTAT + 2 * q + 1))
    vNM, vRS, vBP = vSTAT + 2, vSTAT + 3, vSTAT + 4
    row_stats(vSTAT, vSTAT + 1, vNM, vRS, vT0)
    A('v_cmp_gt_u32 vcc, 32, v%d' % vLANE)
    A('v_cndmask_b32 v%d, 0, v%d, vcc' % (vNM, vNM))
    A('v_perm_b32 v%d, v%d, v%d, s%d' % (vBP, vNM, vNM, sPERM))
    A('v_lshrrev_b32 v%d, 16, v%d' % (vBP + 1, vNM))
    A('v_mov_b32 v%d, 0' % (vBP + 2))
    A('v_mov_b32 v%d, 0' % (vBP + 3))
    for q in (0, 3, 1, 4, 2, 5):
        acc = ar(q * 16, 16)
        A('v_mfma_f32_32x32x16_bf16 %s, %s, %s, %s' % (acc, vr(vAP + q * 4, 4), vr(vBP, 4), acc))
    A('v_mul_f32 v%d, v%d, v%d' % (vRS, vRS, vRS))
    A('s_lshl_b32 s%d, s%d, 2' % (sT0, sRB))
    A('s_add_u32 s%d, s%d, s%d' % (sT0, sT0, sW))
    A('s_mul_i32 s%d, s%d, 96' % (sT0, sT0))
    A('s_mul_i32 s%d, s%d, 6' % (sT1, sCF))
    A('s_add_u32 s%d, s%d, s%d' % (sT0, sT0, sT1))
    A('s_lshl_b32 s%d, s%d, 10' % (sT0, sT0))
    A('s_add_u32 s%d, s%d, 4096' % (sT1, sT0))
    for q in range(3):
        g = vFX + q * 32; u = g + 16
        for r in range(16):
            A('v_accvgpr_read_b32 v%d, a%d' % (g + r, q * 16 + r))
            A('v_accvgpr_read_b32 v%d, a%d' % (u + r, (q + 3) * 16 + r))
        for r in range(16):
            A('v_mul_f32 v%d, v%d, v%d' % (g + r, vRS, g + r))
            A('v_mul_f32 v%d, v%d, v%d' % (g + r, g + r, u + r))
        for r in range(8):
            A('v_cvt_pk_bf16_f32 v%d, v%d, v%d' % (u + r, g + 2 * r, g + 2 * r + 1))
        for mu in range(2):
            f = 2 * q + mu
            A('buffer_store_dwordx4 %s, v%d, s[%d:%d], s%d offen offset:%d' % (vr(u + 4 * mu, 4), vL16, SO, SO + 3, sT0 if f < 4 else sT1, (f % 4) * 1024))
    A.label('L_k4_end')
    A('s_endpgm')
    end_kernel(L, 256, 256, R * SLOT)

def build(extra_launches=0):
    k1(); k2(); k35(3); k4(); k35(5)
    A.raw('L_code_end:')
    hdr = open('cdna_kernels/%s.s.ref' % NAME).read().split('\n')
    out = [l for l in hdr[:11]]
    for (lab, grid, block, lds, *_rest) in kernels:
        out.append('; @launch kernel=%s grid=(%d,1,1) block=(%d,1,1) lds=%d' % (lab, grid, block, lds))
    out.append('.amdgcn_target "amdgcn-amd-amdhsa--gfx950"')
    out.append('.set CODE_BYTES, L_code_end - k1_qkv_kernel - 64')
    body = A.text()
    out.append(body)
    out.append('.section .rodata,"a"')
    for (lab, grid, block, lds, nv, acc, ns) in kernels:
        out += ['.p2align 6', '.amdhsa_kernel %s' % lab,
                '  .amdhsa_next_free_vgpr %d' % nv, '  .amdhsa_next_free_sgpr %d' % max(ns, 16),
                '  .amdhsa_accum_offset %d' % acc, '  .amdhsa_group_segment_fixed_size 0',
                '  .amdhsa_kernarg_size 80', '  .amdhsa_user_sgpr_count 2',
                '  .amdhsa_user_sgpr_kernarg_segment_ptr 1', '  .amdhsa_system_sgpr_workgroup_id_x 1',
                '.end_amdhsa_kernel']
    return '\n'.join(out) + '\n'

if __name__ == '__main__':
    outp = 'cdna_kernels/%s.s' % NAME
    for a in sys.argv[1:]:
        if '=' in a:
            k, v = a.split('=')
            if k == 'out':
                outp = v
            else:
                OPT[k] = int(v)
    txt = build()
    open(outp, 'w').write(txt)
    for k in kernels:
        print(k)
    print('nops inserted:', A.nops, ' bytes:', len(txt))
```
